```python
import torch

def _softmax(x, axis=-1):
    return torch.softmax(x, dim=axis)
def _gelu(x):
    return torch.nn.functional.gelu(x, approximate="tanh")
def _silu(x):
    return torch.nn.functional.silu(x)
def _sigmoid(x):
    return torch.sigmoid(x)
def _layernorm(x, axis=-1, eps=1e-5):
    m = x.mean(dim=axis, keepdim=True)
    v = x.var(dim=axis, keepdim=True, unbiased=False)
    return (x - m) / torch.sqrt(v + eps)
def _scatter_add(tgt, idx, src, axis=0):
    return tgt.clone().index_add_(axis, idx, src)
def _segment_sum(src, seg, n):
    out = torch.zeros((n,) + src.shape[1:], dtype=src.dtype)
    return out.index_add_(0, seg, src)
def _pad(x, pw):
    flat = tuple(v for pair in reversed(pw) for v in pair)
    return torch.nn.functional.pad(x, flat)

kernel_name = 'interleave_layers__mha_block_cached__dense_activation_gelu__decode'

def setup_inputs():

    _w = (lambda a: (lambda t: t.to(torch.bfloat16) if t.is_floating_point() else t)(torch.as_tensor(a)))
    def _A_setup():
        B, Sq, D = 1, 1, 512
        H, Sk, Dh = 32, 4096, 128
        return {
            "x": _w((lambda *s: torch.randn(*s, dtype=torch.bfloat16) * 0.05)(B, Sq, D)),
            "k_cache": _w((lambda *s: torch.randn(*s, dtype=torch.bfloat16) * 0.8)(B, H, Sk, Dh)),
            "v_cache": _w((lambda *s: torch.randn(*s, dtype=torch.bfloat16) * 1.6)(B, H, Sk, Dh)),
            "wq": _w((lambda *s: torch.randn(*s, dtype=torch.bfloat16) * 0.8)(D, H * Dh) * (D ** -0.5)),
            "wo": _w((lambda *s: torch.randn(*s, dtype=torch.bfloat16) * 1.6)(H * Dh, D) * ((H * Dh) ** -0.5)),
        }
    _A_in = _A_setup()

    def _B_setup():
        B, S, D, F = 1, 1, 512, 1376
        return {
            "x": _w((lambda *s: torch.randn(*s, dtype=torch.bfloat16) * 0.05)(B, S, D)),
            "w1": _w((lambda *s: torch.randn(*s, dtype=torch.bfloat16) * 0.4)(D, F) * (D ** -0.5)),
            "b1": _w((lambda *s: torch.randn(*s, dtype=torch.bfloat16) * 0.4)(F) * 0.01),
            "w2": _w((lambda *s: torch.randn(*s, dtype=torch.bfloat16) * 0.4)(F, D) * (F ** -0.5)),
            "b2": _w((lambda *s: torch.randn(*s, dtype=torch.bfloat16) * 0.4)(D) * 0.01),
        }
    _B_in = _B_setup()

    return {
        "A_x": _A_in["x"],
        "A_k_cache": _A_in["k_cache"],
        "A_v_cache": _A_in["v_cache"],
        "A_wq": _A_in["wq"],
        "A_wo": _A_in["wo"],
        "B_x": _B_in["x"],
        "B_w1": _B_in["w1"],
        "B_b1": _B_in["b1"],
        "B_w2": _B_in["w2"],
        "B_b2": _B_in["b2"],
    }

def reference(A_x, A_k_cache, A_v_cache, A_wq, A_wo, B_x, B_w1, B_b1, B_w2, B_b2):
    def _A_ref(x, k_cache, v_cache, wq, wo):
        B, Sq, D = x.shape
        H, Dh = 32, 128
        q = (lambda x, *d: x.permute(*d))((x @ wq).reshape(B, Sq, H, Dh), 0, 2, 1, 3)
        scores = torch.einsum("bhqd,bhkd->bhqk", q, k_cache) * (Dh ** -0.5)
        p = _softmax(scores, axis=-1)
        o = torch.einsum("bhqk,bhkd->bhqd", p, v_cache)
        return (lambda x, *d: x.permute(*d))(o, 0, 2, 1, 3).reshape(B, Sq, H * Dh) @ wo

    def _B_ref(x, w1, b1, w2, b2):
        h = torch.einsum("bsd,df->bsf", x, w1) + b1
        h = _gelu(h)
        return torch.einsum("bsf,fd->bsd", h, w2) + b2

    x = A_x
    x = x + _A_ref(_layernorm(x, axis=-1), A_k_cache, A_v_cache, A_wq, A_wo)
    x = x + _B_ref(_layernorm(x, axis=-1), B_w1, B_b1, B_w2, B_b2)
    x = x + _A_ref(_layernorm(x, axis=-1), A_k_cache, A_v_cache, A_wq, A_wo)
    x = x + _B_ref(_layernorm(x, axis=-1), B_w1, B_b1, B_w2, B_b2)
    return x
```

```python
KN = "interleave_layers__mha_block_cached__dense_activation_gelu__decode"
HEADER = open("cdna_kernels/%s.s.ref" % KN).read().split("; Override launch")[0]

class Asm:
    def __init__(self):
        self.lines = []
        self.nlab = 0
    def __call__(self, s):
        for l in s.strip("\n").split("\n"):
            self.lines.append("    " + l.strip())
    def label(self, name):
        self.lines.append(name + ":")
    def newlabel(self, pfx="L"):
        self.nlab += 1
        return "%s_%d" % (pfx, self.nlab)
    def comment(self, s):
        self.lines.append("    ; " + s)
    def finish(self, grid, block, lds, vgpr, accum, sgpr=102):
        out = HEADER
        out += "; @launch grid=(%d,1,1) block=(%d,1,1) lds=%d\n" % (grid, block, lds)
        out += '.amdgcn_target "amdgcn-amd-amdhsa--gfx950"\n.text\n'
        out += ".globl %s_kernel\n.p2align 8\n.type %s_kernel,@function\n%s_kernel:\n" % (KN, KN, KN)
        out += "\n".join(self.lines) + "\n"
        out += "s_endpgm\n"
        out += '.section .rodata,"a"\n.p2align 6\n.amdhsa_kernel %s_kernel\n' % KN
        out += "  .amdhsa_next_free_vgpr %d\n  .amdhsa_next_free_sgpr %d\n  .amdhsa_accum_offset %d\n" % (vgpr, sgpr, accum)
        out += "  .amdhsa_group_segment_fixed_size 0\n  .amdhsa_kernarg_size 104\n  .amdhsa_user_sgpr_count 2\n"
        out += "  .amdhsa_user_sgpr_kernarg_segment_ptr 1\n  .amdhsa_system_sgpr_workgroup_id_x 1\n"
        out += "  .amdhsa_float_denorm_mode_32 3\n"
        out += ".end_amdhsa_kernel\n"
        return out
```

```python
import re

def regs(tok):
    tok = tok.strip()
    tok = tok.lstrip("-")
    m = re.fullmatch(r"abs\((.*)\)", tok)
    if m: tok = m.group(1)
    m = re.fullmatch(r"\|(.*)\|", tok)
    if m: tok = m.group(1)
    m = re.fullmatch(r"([vas])\[(\d+):(\d+)\]", tok)
    if m:
        return {"%s%d" % (m.group(1), i) for i in range(int(m.group(2)), int(m.group(3)) + 1)}
    m = re.fullmatch(r"([vas])(\d+)", tok)
    if m:
        return {tok}
    if tok in ("vcc", "exec", "m0", "scc"):
        return {tok}
    if tok in ("vcc_lo", "vcc_hi"): return {"vcc"}
    if tok in ("exec_lo", "exec_hi"): return {"exec"}
    return set()

TRANS = ("v_exp_f32", "v_log_f32", "v_rcp_f32", "v_rsq_f32", "v_sqrt_f32", "v_sin_f32", "v_cos_f32")

class Ins:
    def __init__(self, text):
        self.text = text
        t = text.split(";")[0].strip()
        self.label = t.endswith(":")
        self.empty = (t == "") or t.startswith(".")
        self.op = ""
        self.w = set(); self.r = set()
        self.kind = "other"
        self.dpp = False
        self.srcc = set(); self.srcab = set()
        self.data = set()
        if self.label or self.empty: return
        parts = t.split(None, 1)
        op = parts[0]; self.op = op
        rest = parts[1] if len(parts) > 1 else ""
        ops = []
        depth = 0; cur = ""
        for ch in rest:
            if ch in "[(": depth += 1
            if ch in "])": depth -= 1
            if ch == "," and depth == 0:
                ops.append(cur.strip()); cur = ""
            else:
                cur += ch
        if cur.strip(): ops.append(cur.strip())
        mods = ""
        if ops:
            last = ops[-1].split(None, 1)
            ops[-1] = last[0]
            mods = last[1] if len(last) > 1 else ""
        self.mods = mods
        R = [regs(o) for o in ops]
        allr = lambda idx: set().union(*[R[i] for i in idx]) if idx else set()
        n = len(ops)
        if op.startswith("v_mfma"):
            self.kind = "mfma"
            self.w = R[0]; self.srcab = R[1] | R[2]; self.srcc = R[3]; self.r = self.srcab | self.srcc
        elif op.startswith("v_"):
            self.kind = "valu"
            self.dpp = op.endswith("_dpp") or "row_" in mods or "quad_perm" in mods
            base = op.replace("_dpp", "").replace("_e32", "").replace("_e64", "")
            self.base = base
            if base.startswith("v_permlane") and "swap" in base:
                self.w = R[0] | R[1]; self.r = R[0] | R[1]
            elif base in ("v_add_co_u32", "v_sub_co_u32", "v_addc_co_u32"):
                self.w = R[0] | R[1]; self.r = allr(range(2, n))
            else:
                self.w = R[0]; self.r = allr(range(1, n))
                if base in ("v_fmac_f32", "v_dot2c_f32_bf16", "v_writelane_b32") or self.dpp:
                    self.r = self.r | R[0]
            self.r = self.r | {"exec"}
        elif op.startswith("ds_"):
            self.kind = "ds"
            if op.startswith("ds_read") or op.startswith("ds_bpermute") or op.startswith("ds_swizzle"):
                self.w = R[0]; self.r = allr(range(1, n))
            else:
                self.r = allr(range(n))
        elif op.startswith("buffer_") or op.startswith("global_"):
            self.kind = "vmem"
            lds = re.search(r"\blds\b", mods) is not None
            if lds:
                self.r = allr(range(n)) | {"m0"}; self.ldsdma = True
            elif "_load" in op:
                self.w = R[0]; self.r = allr(range(1, n))
                if "d16" in op: self.r |= R[0]
            else:
                self.r = allr(range(n))
                if op.startswith("buffer_"): self.data = R[0]
                else: self.data = R[1]
                if "atomic" in op and "sc0" in mods: self.w = R[0]
                if not (op.endswith("x4") or op.endswith("x3")): self.data = set()
        elif op.startswith("s_"):
            self.kind = "salu"
            if op.startswith("s_cmp") or op.startswith("s_bitcmp") or op.startswith("s_cbranch") or op in ("s_branch", "s_waitcnt", "s_barrier", "s_nop", "s_sleep", "s_endpgm", "s_setprio"):
                self.r = allr(range(n))
            else:
                self.w = R[0] if n else set(); self.r = allr(range(1, n))
                if "saveexec" in op: self.w |= {"exec"}
    def slots(self):
        if self.label or self.empty: return 0
        if self.op == "s_nop":
            return int(self.text.split(";")[0].split()[1], 0) + 1
        return 1

def isv(s): return {x for x in s if x[0] in "va"}
def iss(s): return {x for x in s if x[0] == "s" and x != "scc" or x == "vcc"}

def need(p, c):
    n = 0
    if p.kind == "valu":
        wv = isv(p.w); ws = iss(p.w)
        isdot = p.base.startswith("v_dot")
        if c.kind == "mfma" and wv & c.r: n = max(n, 3 if isdot else 2)
        if c.kind == "valu":
            if c.dpp and wv & c.r: n = max(n, 2)
            if c.base.startswith("v_permlane") and wv & c.r: n = max(n, 2)
            if c.base in ("v_readlane_b32", "v_readfirstlane_b32") and wv & c.r: n = max(n, 1)
            if ws & c.r:
                n = max(n, 4 if c.base in ("v_readlane_b32", "v_writelane_b32") else 2)
            if p.base in TRANS and c.base not in TRANS and wv & c.r: n = max(n, 1)
            if isdot and wv & (c.r | c.w):
                if c.base == p.base:
                    t = c.text.split(";")[0]
                    ops = [o.strip() for o in t.split(None, 1)[1].split(",")]
                    ab = regs(ops[1].split()[0]) | regs(ops[2].split()[0])
                    if wv & ab: n = max(n, 3)
                else:
                    n = max(n, 3)
        if c.kind in ("vmem", "ds"):
            if ws & c.r: n = max(n, 5)
            if isdot and wv & (c.r | c.w): n = max(n, 3)
            if p.base in TRANS and wv & c.r: n = max(n, 1)
    if p.kind == "mfma":
        if c.kind == "mfma":
            if p.w & c.srcab: n = max(n, 8)
            if p.w & c.srcc and p.w != c.srcc: n = max(n, 6)
            if p.w & c.w and p.w != c.srcc: n = max(n, 8)
        elif c.kind in ("valu", "vmem", "ds"):
            if p.w & (c.r | c.w): n = max(n, 8)
            if c.kind == "valu" and p.srcc & c.w: n = max(n, 3)
    if p.kind == "salu":
        if "m0" in p.w and c.kind == "vmem" and getattr(c, "ldsdma", False): n = max(n, 1)
    if p.kind == "vmem" and p.data:
        if p.data & c.w: n = max(n, 2 if c.kind in ("valu", "mfma") else 1)
    return n

def pad(lines, verbose=False):
    out = []
    added = 0
    for text in lines:
        c = Ins(text)
        if not (c.label or c.empty):
            dist = 0; req = 0
            for p in reversed(out):
                if dist >= 10: break
                if not (p.label or p.empty):
                    k = need(p, c) - dist
                    if k > req: req = k
                dist += p.slots()
            if req > 0:
                out.append(Ins("    s_nop %d ; hz" % (req - 1)))
                added += req
        out.append(c)
    if verbose: print("hazard pad: added %d wait states" % added)
    return [i.text for i in out]
```

```python
import sys, math, struct
from asmlib import *
import hz

def f32(x):
    return "0x%08x" % struct.unpack("<I", struct.pack("<f", x))[0]

L_T    = 0x20000
L_ST   = 0x24000
L_SB   = 0x26000
L_MB   = 0x26100
L_OB   = 0x26800
LDS_BYTES = 0x27000
LS   = 0x40000
W_O1 = 0x00000
W_S1 = 0x10000
W_Q6 = 0x11000
W_H2 = 0x20000
W_G  = 0x30000
W_STAMP = 0x4000000
POLL_LIMIT = 400000

sW, sG, sJ, sH, sC = "s3", "s4", "s5", "s6", "s7"
WS, WS1 = "s[8:11]", "s[12:15]"
pX, pB1, pB2, pOUT, pDBG, pWS = "s[16:17]", "s[30:31]", "s[34:35]", "s[36:37]", "s[38:39]", "s[40:41]"
SK, SV, ST1, ST2 = "s[44:47]", "s[48:51]", "s[52:55]", "s[56:59]"
sO1st, sS1st, sO1ld, sS1ld, sH2st, sH2ld, sH3st, sGld, sTst, sH4ld, sQ6ld, sKV = ["s%d" % i for i in range(60, 72)]
mA1, mA2, mA3, mGE2 = "s[72:73]", "s[74:75]", "s[76:77]", "s[78:79]"
sLayer, sFast, sC1, sOnes, sCnt, sT0, sT1, sT2, sT3, sLw = ["s%d" % i for i in range(80, 90)]
STAMP_REGS = [18, 20, 22, 24, 26, 28, 32, 90, 92, 94, 96, 98, 100]
vL16, vStW, vStR, vT8, vRW, vPW, vOW, vSW, vA16, vRes, vL2 = ["v%d" % i for i in range(1, 12)]
vH4ld, vMW, vB1 = "v12", "v13", "v14"
vH1ld, vMR, vS1a, vS1b, vH2st, vH3st, vOR, vL4, vL32, vB2, vBase, vTT = ["v%d" % i for i in range(12, 24)]
T = ["v%d" % i for i in range(24, 32)]
DB, XB, VB = 32, 64, 128
def vr(b, n=4): return "v[%d:%d]" % (b, b + n - 1)
def ar(b, n=4): return "a[%d:%d]" % (b, b + n - 1)
MF = "v_mfma_f32_16x16x32_bf16"

class G:
    def __init__(self, stamps=False, opt=None):
        self.a = Asm()
        self.stubs = []
        self.stamps = stamps
        self.opt = opt or {}
        self.nst = {}
    def __call__(self, s): self.a(s)
    def lab(self, p="L"): return self.a.newlabel(p)
    def label(self, n): self.a.label(n)
    def stamp(self, role, name):
        if not self.stamps: return
        lst = self.nst.setdefault(role, [])
        i = len(lst)
        assert i < len(STAMP_REGS), "too many stamps"
        lst.append(name)
        r = STAMP_REGS[i]
        self("s_memrealtime s[%d:%d]" % (r, r + 1))
    def pub(self, st):
        ls, lj = self.lab("Lslow"), self.lab("Ljoin")
        sts = st if isinstance(st, list) else [st]
        self("s_cmp_eq_u32 %s, 0" % sFast)
        self("s_cbranch_scc1 %s" % ls)
        for s in sts: self(s)
        self.label(lj)
        self.stubs.append((ls, [s + " sc1" if s.startswith("buffer_store") else s for s in sts], lj))
    def poll(self, loads, regs, spec_entry=None):
        lp, lo = self.lab("Lpoll"), self.lab("Lpout")
        self.label(lp)
        for l in loads: self(l)
        self("s_add_u32 %s, %s, 1" % (sCnt, sCnt))
        self("s_cmp_gt_u32 %s, %d" % (sCnt, POLL_LIMIT))
        self("s_waitcnt vmcnt(0)")
        self("s_cbranch_scc1 %s" % lo)
        if spec_entry: self.label(spec_entry)
        t = T[7]
        rs = list(regs)
        if len(rs) % 2 == 0:
            self("v_max_u32 %s, v%d, v%d" % (t, rs[0], rs[1])); rs = rs[2:]
        else:
            self("v_max3_u32 %s, v%d, v%d, v%d" % (t, rs[0], rs[1], rs[2])); rs = rs[3:]
        while rs:
            self("v_max3_u32 %s, %s, v%d, v%d" % (t, t, rs[0], rs[1])); rs = rs[2:]
        self("v_cmp_eq_u32 vcc, -1, %s" % t)
        self("s_cbranch_vccnz %s" % lp)
        self.label(lo)
    def wred(self, op, regs):
        for m in ("row_shr:1 row_mask:0xf", "row_shr:2 row_mask:0xf", "row_shr:4 row_mask:0xf", "row_shr:8 row_mask:0xf",
                  "row_bcast:15 row_mask:0xa", "row_bcast:31 row_mask:0xc"):
            for r in regs:
                self("%s_dpp %s, %s, %s %s bank_mask:0xf" % (op, r, r, r, m))

    def xgemv(self, abase):
        xv = DB + 28
        self("ds_write_b128 %s, %s" % (vStW, vr(xv)))
        for kb in range(8):
            self("ds_read_b128 %s, %s offset:%d" % (vr(XB + 4 * kb), vStR, kb * 64))
        s1, s2 = T[1], T[2]
        self("v_dot2_f32_bf16 %s, v%d, %s, 0" % (s1, xv, sOnes))
        self("v_dot2_f32_bf16 %s, v%d, v%d, 0" % (s2, xv, xv))
        for i in range(1, 4):
            self("v_dot2_f32_bf16 %s, v%d, %s, %s" % (s1, xv + i, sOnes, s1))
            self("v_dot2_f32_bf16 %s, v%d, v%d, %s" % (s2, xv + i, xv + i, s2))
        dpp = [(m, r) for m in ("row_shr:1 row_mask:0xf", "row_shr:2 row_mask:0xf", "row_shr:4 row_mask:0xf", "row_shr:8 row_mask:0xf",
                  "row_bcast:15 row_mask:0xa", "row_bcast:31 row_mask:0xc") for r in (s1, s2)]
        tail = [
            "v_readlane_b32 %s, %s, 63" % (sT0, s1),
            "v_readlane_b32 %s, %s, 63" % (sT1, s2),
            "v_mov_b32 %s, %s" % (T[3], f32(1.0 / 512)),
            "v_mul_f32 %s, %s, %s" % (T[4], sT0, T[3]),
            "v_mul_f32 %s, %s, %s" % (T[5], sT1, T[3]),
            "v_fma_f32 %s, -%s, %s, %s" % (T[5], T[4], T[4], T[5]),
            "v_max_f32 %s, 0, %s" % (T[5], T[5]),
            "v_add_f32 %s, %s, %s" % (T[5], f32(1e-5), T[5]),
            "v_rsq_f32 %s, %s" % (T[5], T[5]),
        ]
        fill = ["v_add_f32_dpp %s, %s, %s %s bank_mask:0xf" % (r, r, r, m) for m, r in dpp] + tail
        for kb in range(16):
            if kb < 8:
                self("ds_read_b128 %s, %s offset:%d" % (vr(XB + 4 * (kb + 8)), vStR, (kb + 8) * 64))
                self("s_waitcnt lgkmcnt(8)")
            else:
                self("s_waitcnt lgkmcnt(%d)" % (15 - kb))
            self("%s %s, %s, %s, %s" % (MF, vr(DB), vr(XB + 4 * kb), ar(abase + 4 * kb), "0" if kb == 0 else vr(DB)))
            for k in range(2):
                if fill: self(fill.pop(0))
        while fill: self(fill.pop(0))
        self("v_fma_f32 %s, -%s, v%d, v%d" % (T[0], T[4], DB + 1, DB))
        self("v_mul_f32 %s, %s, %s" % (T[0], T[5], T[0]))

    def pack16_pub(self, soff, force_sc1=False):
        self("v_mov_b32_dpp %s, %s quad_perm:[1,1,3,3] row_mask:0xf bank_mask:0xf" % (T[1], T[0]))
        self("v_cvt_pk_bf16_f32 %s, %s, %s" % (T[1], T[0], T[1]))
        self("v_min_u32 %s, -2, %s" % (T[1], T[1]))
        self("s_mov_b64 exec, 0x5555")
        st = "buffer_store_dword %s, %s, %s, %s offen" % (T[1], vL2, WS, soff)
        if force_sc1: self(st + " sc1")
        else: self.pub(st)
        self("s_mov_b64 exec, -1")

    def qloads(self):
        return ["buffer_load_dwordx4 %s, %s, %s, %s offen offset:%d sc1" % (vr(XB + 4 * kb), vA16, WS, sQ6ld, kb * 64) for kb in range(4)]

    def sphase(self):
        for gq in range(8):
            for kb in range(4):
                self("%s %s, %s, %s, %s" % (MF, vr(DB + 4 * gq), vr(XB + 4 * kb), ar((gq * 4 + kb) * 4), "0" if kb == 0 else vr(DB + 4 * gq)))
            if gq == 6:
                self.sel4(T[0], 0)
                self("v_mul_f32 %s, %s, %s" % (T[0], sC1, T[0]))
        self.sel4(T[1], 4)
        self("v_mul_f32 %s, %s, %s" % (T[1], sC1, T[1]))
        self("v_max_f32 %s, %s, %s" % (T[2], T[0], T[1]))
        self.wred("v_max_f32", [T[2]])
        self("v_readlane_b32 %s, %s, 63" % (sT2, T[2]))
        self("v_subrev_f32 %s, %s, %s" % (T[0], sT2, T[0]))
        self("v_subrev_f32 %s, %s, %s" % (T[1], sT2, T[1]))
        self("v_exp_f32 %s, %s" % (T[0], T[0]))
        self("v_exp_f32 %s, %s" % (T[1], T[1]))
        self("v_cvt_pk_bf16_f32 %s, %s, %s" % (T[2], T[0], T[1]))
        self("ds_write_b16 %s, %s" % (vPW, T[2]))
        self("ds_write_b16_d16_hi %s, %s offset:128" % (vPW, T[2]))
        for kb in range(4):
            self("ds_read_b128 %s, %s offset:%d" % (vr(XB + 4 * kb), vStR, kb * 64))
        self("v_add_f32 %s, %s, %s" % (T[6], T[0], T[1]))
        self.wred("v_add_f32", [T[6]])
        self("v_readlane_b32 %s, %s, 63" % (sT3, T[6]))

    def sel4(self, dst, d0):
        self("v_cndmask_b32 %s, v%d, v%d, %s" % (dst, DB + 4 * d0, DB + 4 * (d0 + 1), mA1))
        self("v_cndmask_b32 %s, %s, v%d, %s" % (dst, dst, DB + 4 * (d0 + 2), mA2))
        self("v_cndmask_b32 %s, %s, v%d, %s" % (dst, dst, DB + 4 * (d0 + 3), mA3))

    def vtr1(self, kb, dt):
        for hf in range(2):
            b = VB + (kb * 8 + dt) * 4 + hf * 2
            self("ds_read_b64_tr_b16 %s, %s offset:%d" % (vr(b, 2), vT8, ((kb * 2 + hf) * 8 + dt) * 512))
    def pvm(self, kb, reads=False):
        if reads:
            for dt in range(5): self.vtr1(kb, dt)
        for dt in range(8):
            if reads:
                if dt + 5 < 8: self.vtr1(kb, dt + 5)
                self("s_waitcnt lgkmcnt(%d)" % min(10, 14 - 2 * dt))
            self("%s %s, %s, %s, %s" % (MF, vr(DB + 4 * dt), vr(XB + 4 * kb), vr(VB + (kb * 8 + dt) * 4), "0" if kb == 0 else vr(DB + 4 * dt)))
    def owrite(self):
        self("v_mov_b32 %s, %s" % (T[2], sT2))
        self("v_mov_b32 %s, %s" % (T[3], sT3))
        self("ds_write2_b32 %s, %s, %s offset0:0 offset1:4" % (vSW, T[2], T[3]))
        self.sel4(T[0], 0)
        self.sel4(T[1], 4)
        self("ds_write2st64_b32 %s, %s, %s offset0:0 offset1:1" % (vOW, T[0], T[1]))
        self("s_waitcnt lgkmcnt(0)")
        self("s_barrier")

    def kloads(self, vOff):
        self("s_mov_b32 %s, %s" % (sT0, sKV))
        for gq in range(8):
            for kb in range(4):
                self("buffer_load_dwordx4 %s, %s, %s, %s offen offset:%d nt" % (ar((gq * 4 + kb) * 4), vOff, SK, sT0, kb * 64))
            if gq != 7: self("s_add_u32 %s, %s, 4096" % (sT0, sT0))
    def vdma(self, vOff, i0, i1):
        for i in range(i0, i1):
            kb, hf, dp = i >> 3, (i >> 2) & 1, i & 3
            self("s_add_u32 m0, %s, %d" % (sLw, i * 1024 - dp * 64))
            if dp == 0 or i == i0:
                self("s_add_u32 %s, %s, %d" % (sT1, sKV, (kb * 32 + hf * 4) * 256))
            self("buffer_load_dwordx4 %s, %s, %s offen offset:%d nt lds" % (vOff, SV, sT1, dp * 64))

    def final_pack(self, z):
        self("v_cvt_pk_bf16_f32 %s, %s, %s" % (T[2], z, z))
        self("v_mov_b32 %s, %s" % (T[1], z))
        self("v_and_b32 %s, 0xffff0000, %s" % (vRes, T[2]))
        self("v_permlane32_swap_b32 %s, %s" % (z, T[1]))
        self("v_cvt_pk_bf16_f32 %s, %s, %s" % (T[1], z, T[1]))

    def build(self):
        g = self
        o = self.opt
        WPOL = o.get("wpol", "")
        g("s_cmp_ge_u32 s2, 256")
        g("s_cbranch_scc1 L_end")
        g("s_load_dwordx16 s[16:31], s[0:1], 0")
        g("s_load_dwordx8 s[32:39], s[0:1], 64")
        g("s_load_dwordx2 s[40:41], s[0:1], 96")
        g("v_lshrrev_b32 v24, 6, v0")
        g("v_and_b32 v0, 63, v0")
        g("v_readfirstlane_b32 %s, v24" % sW)
        g("s_and_b32 %s, s2, 7" % sG)
        g("s_lshr_b32 %s, s2, 3" % sJ)
        g("s_and_b32 %s, %s, 3" % (sT0, sJ))
        g("s_lshl_b32 %s, %s, 2" % (sH, sG))
        g("s_add_u32 %s, %s, %s" % (sH, sH, sT0))
        g("s_lshr_b32 %s, %s, 2" % (sC, sJ))
        g("s_lshl_b32 %s, %s, 20" % (sKV, sH))
        g("s_lshl_b32 %s, %s, 17" % (sT0, sC))
        g("s_add_u32 %s, %s, %s" % (sKV, sKV, sT0))
        g("s_lshl_b32 %s, %s, 15" % (sLw, sW))
        g("s_add_u32 %s, %s, %s" % (sKV, sKV, sLw))
        g("v_lshrrev_b32 v32, 4, v0")
        g("v_and_b32 v33, 15, v0")
        g("v_lshlrev_b32 v37, 8, v33")
        g("v_lshl_add_u32 v40, v32, 4, v37")
        g("v_bfe_u32 v34, v0, 3, 2")
        g("v_bfe_u32 v37, v0, 1, 2")
        g("v_lshl_add_u32 v34, v34, 3, v37")
        g("v_lshrrev_b32 v35, 5, v0")
        g("v_and_b32 v36, 1, v0")
        g("v_lshlrev_b32 v37, 4, v36")
        g("v_lshl_add_u32 v38, v35, 5, v37")
        g("v_lshl_add_u32 v41, v34, 8, v38")
        g("v_lshl_add_u32 v39, v35, 2, v34")
        g("s_waitcnt lgkmcnt(0)")
        for srd, p, nb in ((44, 18, 0x2000000), (48, 20, 0x2000000)):
            g("s_mov_b32 s%d, s%d\ns_and_b32 s%d, s%d, 0xffff\ns_mov_b32 s%d, 0x%x\ns_mov_b32 s%d, 0x20000" % (srd, p, srd + 1, p + 1, srd + 2, nb, srd + 3))
        g("s_mov_b32 s8, s40\ns_and_b32 s9, s41, 0xffff\ns_mov_b32 s10, 0x%x\ns_mov_b32 s11, 0x20000" % LS)
        g("s_add_u32 s12, s40, 0x%x\ns_addc_u32 s13, s41, 0\ns_and_b32 s13, s13, 0xffff\ns_mov_b32 s14, 0x%x\ns_mov_b32 s15, 0x20000" % (LS, LS))
        g("s_cmp_eq_u32 %s, 3" % sW)
        g("s_cbranch_scc1 L_w3")

        for srd, p, nb in ((52, 28, 512 * 1376 * 2), (56, 32, 1376 * 512 * 2)):
            g("s_mov_b32 s%d, s%d\ns_and_b32 s%d, s%d, 0xffff\ns_mov_b32 s%d, 0x%x\ns_mov_b32 s%d, 0x20000" % (srd, p, srd + 1, p + 1, srd + 2, nb, srd + 3))
        g.stamp("A", "start")
        g.kloads("v40")
        self.common_setup()
        g("v_min_u32 %s, 59, v0" % vH4ld)
        g("v_lshlrev_b32 %s, 4, %s" % (vH4ld, vH4ld))
        g("s_lshl_b32 %s, %s, 6" % (sT0, sW))
        g("s_add_u32 %s, %s, 0x%x" % (sT0, sT0, L_MB))
        g("v_lshlrev_b32 %s, 2, v33" % vMW)
        g("v_add_u32 %s, %s, %s" % (vMW, sT0, vMW))
        g("s_mul_i32 s42, %s, 3" % sJ)
        g("s_add_u32 s42, s42, %s" % sW)
        g("s_lshl_b32 s42, s42, 5")
        g("s_add_u32 %s, %s, s42" % (sTst, sGld))
        g("s_add_u32 %s, %s, 4096" % (sTst, sTst))
        g("s_mul_i32 %s, %s, %d" % (sH4ld, sW, 14 * 64))
        g("s_add_u32 %s, %s, %s" % (sH4ld, sH4ld, sGld))
        g("s_add_u32 %s, %s, 4096" % (sH4ld, sH4ld))
        g("v_mov_b32 v15, v41")
        g("s_movk_i32 %s, 2752" % sT0)
        g("v_mul_lo_u32 v16, v39, %s" % sT0)
        g("v_add_u32 v16, v16, v37")
        g("v_lshl_add_u32 v17, v39, 10, v37")
        g("v_lshlrev_b32 v18, 1, v33")
        g("v_add_u32 v18, s42, v18")
        g("v_min_u32 v18, 2750, v18")
        g.vdma("v15", 0, 16)
        g("s_barrier")
        for l in g.qloads(): g(l)
        g.vdma("v15", 16, 24)
        g("s_waitcnt vmcnt(8)")
        e = g.lab("Lspec"); g("s_branch %s" % e)
        g.poll(g.qloads(), range(XB, XB + 16), spec_entry=e)
        g.stamp("A", "q1")
        g.sphase()
        g.vdma("v15", 24, 32)
        g("s_waitcnt lgkmcnt(0)")
        for kb in (0, 1):
            g.pvm(kb, True)
        def w1l(k0, k1):
            for kb in range(k0, k1):
                g("s_add_u32 %s, s42, %d" % (sT0, kb * 32 * 2752))
                g("buffer_load_dwordx4 %s, v16, %s, %s offen %s" % (ar(128 + 4 * kb), ST1, sT0, WPOL))
        w1l(0, 8)
        g("s_waitcnt vmcnt(16)")
        g.pvm(2, True)
        w1l(8, 12)
        g("s_waitcnt vmcnt(12)")
        g.stamp("A", "vdone")
        g.pvm(3, True)
        g.owrite()
        g.stamp("A", "Bo0")
        w1l(12, 16)
        g("global_load_ushort %s, v18, %s" % (vB1, pB1))
        g("s_mul_i32 %s, %s, %d" % (sT1, sW, 14 * 32 * 1024))
        g("s_lshl_b32 %s, %s, 5" % (sT0, sJ))
        g("s_add_u32 %s, %s, %s" % (sT1, sT1, sT0))
        for kb in range(15):
            if kb == 14:
                g("s_cmp_eq_u32 %s, 2" % sW)
                g("s_cselect_b32 %s, %s, 0x200000" % (sT1, sT1))
            g("buffer_load_dwordx4 %s, v17, %s, %s offen %s" % (ar(192 + 4 * kb), ST2, sT1, WPOL))
            if kb < 14: g("s_add_u32 %s, %s, %d" % (sT1, sT1, 32 * 1024))
        g("v_mov_b32 %s, 0x%x" % (T[0], L_SB))
        g("ds_read_b32 %s, %s offset:32" % (T[0], T[0]))
        for i in range(31):
            g("s_waitcnt vmcnt(%d) lgkmcnt(9)" % ((31 - i) if i < 16 else (30 - i)))
            b = 128 + 4 * i
            g("ds_write_b128 %s, %s offset:%d" % (vRW, ar(b), i * 1024))
            g("ds_read_b64_tr_b16 %s, %s offset:%d" % (ar(b, 2), vT8, i * 1024))
            g("ds_read_b64_tr_b16 %s, %s offset:%d" % (ar(b + 2, 2), vT8, i * 1024 + 512))
        g("s_waitcnt lgkmcnt(0)")
        g("v_readfirstlane_b32 %s, %s" % (sFast, T[0]))
        g("v_lshlrev_b32 %s, 16, %s" % (vB1, vB1))
        g.stamp("A", "relay")
        g.label("L_loopA")
        g("s_barrier")
        g.poll(["buffer_load_dwordx4 %s, %s, %s, %s offen sc1" % (vr(DB + 28), vL16, WS, sGld)], range(DB + 28, DB + 32))
        g.xgemv(128)
        k0 = -2.0 * math.sqrt(2.0 / math.pi) * math.log2(math.e)
        g("v_add_f32 %s, %s, %s" % (T[0], vB1, T[0]))
        g("v_mov_b32 %s, %s" % (T[2], f32(k0)))
        g("v_mul_f32 %s, %s, %s" % (T[1], T[0], T[0]))
        g("v_fmac_f32 %s, %s, %s" % (T[2], f32(k0 * 0.044715), T[1]))
        g("v_mul_f32 %s, %s, %s" % (T[2], T[0], T[2]))
        g("v_exp_f32 %s, %s" % (T[2], T[2]))
        g("v_add_f32 %s, 1.0, %s" % (T[2], T[2]))
        g("v_rcp_f32 %s, %s" % (T[2], T[2]))
        g("v_mul_f32 %s, %s, %s" % (T[0], T[0], T[2]))
        g.pack16_pub(sTst)
        g.poll(["buffer_load_dwordx4 %s, %s, %s, %s offen sc1" % (vr(DB + 28), vH4ld, WS, sH4ld)], range(DB + 28, DB + 32))
        g("ds_write_b128 %s, %s" % (vStW, vr(DB + 28)))
        for kb in range(8):
            g("ds_read_b128 %s, %s offset:%d" % (vr(XB + 4 * kb), vStR, kb * 64))
        for kb in range(15):
            if kb < 7:
                g("ds_read_b128 %s, %s offset:%d" % (vr(XB + 4 * (kb + 8)), vStR, (kb + 8) * 64))
                g("s_waitcnt lgkmcnt(8)")
            else:
                g("s_waitcnt lgkmcnt(%d)" % (14 - kb))
            g("%s %s, %s, %s, %s" % (MF, vr(DB), vr(XB + 4 * kb), ar(192 + 4 * kb), "0" if kb == 0 else vr(DB)))
        g("ds_write_b32 %s, v%d" % (vMW, DB))
        g("s_waitcnt lgkmcnt(0)")
        g("s_barrier")
        g("s_cmp_eq_u32 %s, 1" % sLayer)
        g("s_cbranch_scc1 L_endA")
        g("s_mov_b32 %s, 1" % sLayer)
        g("s_mov_b32 s8, s12\ns_mov_b32 s9, s13")
        g("s_barrier")
        g.poll(g.qloads(), range(XB, XB + 16))
        g.sphase()
        g("s_waitcnt lgkmcnt(0)")
        for kb in range(4): g.pvm(kb)
        g.owrite()
        g("s_cmp_eq_u32 %s, 0" % sG)
        g("s_cbranch_scc1 L_loopA")
        g.label("L_endA")
        self.stamp_out("A")
        g("s_endpgm")

        g.label("L_w3")
        for srd, p, nb in ((52, 22, 512 * 4096 * 2), (56, 24, 4096 * 512 * 2)):
            g("s_mov_b32 s%d, s%d\ns_and_b32 s%d, s%d, 0xffff\ns_mov_b32 s%d, 0x%x\ns_mov_b32 s%d, 0x20000" % (srd, p, srd + 1, p + 1, srd + 2, nb, srd + 3))
        g.stamp("B", "start")
        g("v_lshl_add_u32 v42, v39, 13, v37")
        g("s_lshl_b32 %s, %s, 8" % (sT0, sH))
        g("s_lshl_b32 %s, %s, 5" % (sT1, sC))
        g("s_add_u32 %s, %s, %s" % (sT0, sT0, sT1))
        g("s_mov_b32 m0, 0x%x" % L_T)
        for kb in range(16):
            g("buffer_load_dwordx4 v42, %s, %s offen %s lds" % (ST1, sT0, WPOL))
            if kb != 15:
                g("s_add_u32 m0, m0, 1024")
                g("s_add_u32 %s, %s, %d" % (sT0, sT0, 32 * 8192))
        self.common_setup()
        g("global_load_dwordx4 %s, %s, %s" % (vr(DB + 28), vL16, pX))
        g("v_and_b32 %s, 7, v0" % vH1ld)
        g("v_lshlrev_b32 %s, 8, %s" % (vH1ld, vH1ld))
        g("v_add_u32 %s, %s, %s" % (vH1ld, vH1ld, vA16))
        g("v_and_b32 %s, 16, v0" % vS1a)
        g("v_xor_b32 %s, 16, %s" % (vS1b, vS1a))
        g("v_lshlrev_b32 %s, 2, v33" % vH2st)
        g("v_lshl_add_u32 %s, v32, 11, %s" % (vH2st, vH2st))
        g("v_and_b32 v43, 3, v0")
        g("v_bfe_u32 v44, v0, 4, 1")
        g("v_lshlrev_b32 %s, 3, v43" % vH3st)
        g("v_lshl_add_u32 %s, v44, 2, %s" % (vH3st, vH3st))
        g("v_lshl_add_u32 v45, v44, 1, v35")
        g("v_lshl_add_u32 v45, v43, 2, v45")
        g("v_lshlrev_b32 %s, 2, v45" % vMR)
        g("v_add_u32 %s, 0x%x, %s" % (vMR, L_MB, vMR))
        g("s_lshl_b32 %s, %s, 5" % (sT0, sJ))
        g("v_lshlrev_b32 v45, 1, v45")
        g("v_add_u32 v45, %s, v45" % sT0)
        g("global_load_ushort %s, v45, %s" % (vRes, pX))
        g("global_load_ushort %s, v45, %s" % (vB2, pB2))
        g("v_lshlrev_b32 %s, 3, v0" % vOR)
        g("v_add_u32 %s, 0x%x, %s" % (vTT, L_T, vOR))
        g("v_add_u32 %s, 0x%x, %s" % (vOR, L_OB, vOR))
        g("v_lshlrev_b32 %s, 2, v0" % vL4)
        g("v_lshlrev_b32 %s, 5, v0" % vL32)
        g("v_mov_b32 %s, 0x%x" % (vBase, L_SB))
        g("s_lshl_b32 %s, %s, 11" % (sO1ld, sH))
        g("s_lshl_b32 %s, %s, 8" % (sT0, sC))
        g("s_add_u32 %s, %s, %s" % (sO1st, sO1ld, sT0))
        g("s_lshl_b32 %s, %s, 7" % (sS1ld, sH))
        g("s_add_u32 %s, %s, 0x%x" % (sS1ld, sS1ld, W_S1))
        g("s_lshl_b32 %s, %s, 2" % (sT0, sC))
        g("s_add_u32 %s, %s, %s" % (sS1st, sS1ld, sT0))
        g("s_lshl_b32 %s, %s, 13" % (sH2st, sC))
        g("s_lshl_b32 %s, %s, 6" % (sT0, sH))
        g("s_add_u32 %s, %s, %s" % (sH2st, sH2st, sT0))
        g("s_add_u32 %s, %s, 0x%x" % (sH2st, sH2st, W_H2))
        g("s_lshl_b32 %s, %s, 11" % (sH2ld, sJ))
        g("s_add_u32 %s, %s, 0x%x" % (sH2ld, sH2ld, W_H2))
        g("s_lshl_b32 %s, %s, 5" % (sT0, sJ))
        g("s_add_u32 %s, %s, %s" % (sH3st, sGld, sT0))
        g("s_lshl_b32 %s, %s, 5" % (sT0, sC))
        g("s_add_u32 %s, %s, %s" % (sTst, sQ6ld, sT0))
        g("s_mul_i32 %s, %s, 96" % (sH4ld, sJ))
        g("s_add_u32 %s, %s, %s" % (sH4ld, sH4ld, sGld))
        g("s_add_u32 %s, %s, 4096" % (sH4ld, sH4ld))
        g("v_mov_b32 %s, -1" % T[0])
        for W in (WS, WS1):
            g("buffer_store_dword %s, %s, %s, %s offen sc1" % (T[0], vL4, W, sO1st))
            g("buffer_store_dword %s, %s, %s, %s offen sc1" % (T[0], vH2st, W, sH2st))
        g("s_mov_b64 exec, 0xffffff")
        for W in (WS, WS1):
            g("buffer_store_dword %s, %s, %s, %s offen sc1" % (T[0], vL4, W, sH4ld))
        g("s_mov_b64 exec, 0xff")
        for W in (WS, WS1):
            g("buffer_store_dword %s, %s, %s, %s offen sc1" % (T[0], vL4, W, sH3st))
            g("buffer_store_dword %s, %s, %s, %s offen sc1" % (T[0], vL4, W, sTst))
        g("buffer_store_dword %s, %s, %s, %s offen offset:1024 sc1" % (T[0], vL4, WS, sH3st))
        g("s_mov_b64 exec, 3")
        for W in (WS, WS1):
            g("buffer_store_dword %s, %s, %s, %s offen sc1" % (T[0], vL32, W, sS1st))
        g("s_mov_b64 exec, -1")
        g("v_mov_b32 v46, v41")
        g.kloads("v40")
        g("s_waitcnt vmcnt(32)")
        g("s_getreg_b32 %s, hwreg(HW_REG_XCC_ID, 0, 3)" % sT0)
        g("s_lshl_b32 %s, %s, 3" % (sT0, sT0))
        g("s_mov_b64 s[42:43], 1")
        g("s_lshl_b64 s[42:43], s[42:43], %s" % sT0)
        g("s_lshl_b32 %s, %s, 3" % (sT1, sG))
        g("v_mov_b32 %s, s42\nv_mov_b32 %s, s43\nv_mov_b32 %s, %s" % (T[0], T[1], T[2], sT1))
        g("s_mov_b64 exec, 1")
        g("global_atomic_add_x2 %s, v[24:25], %s sc1" % (T[2], pDBG))
        g("s_mov_b64 exec, -1")
        g("s_lshl_b64 s[42:43], s[42:43], 5")
        for kb in range(16):
            if kb >= 6: g("s_waitcnt lgkmcnt(10)")
            for hf in range(2):
                g("ds_read_b64_tr_b16 %s, %s offset:%d" % (ar(128 + 4 * kb + 2 * hf, 2), vTT, kb * 1024 + hf * 512))
        g("v_lshlrev_b32 %s, 16, %s" % (vRes, vRes))
        g("v_lshlrev_b32 %s, 16, %s" % (vB2, vB2))
        g("s_waitcnt lgkmcnt(0)")
        g.xgemv(128)
        g.pack16_pub(sTst, force_sc1=True)
        g.stamp("B", "q1pub")
        g.vdma("v46", 0, 8)
        g("v_and_b32 v47, 7, v0")
        g("v_lshlrev_b32 v47, 3, v47")
        chk = "global_load_dwordx2 v[48:49], v47, %s sc1" % pDBG
        g(chk)
        g.vdma("v46", 8, 16)
        g("s_waitcnt vmcnt(8)")
        g("s_branch L_chk1")
        g.label("L_chk0")
        g(chk)
        g("s_add_u32 %s, %s, 1" % (sCnt, sCnt))
        g("s_cmp_gt_u32 %s, %d" % (sCnt, POLL_LIMIT))
        g("s_waitcnt vmcnt(0)")
        g("s_cbranch_scc1 L_chk2")
        g.label("L_chk1")
        g("v_sad_u8 %s, v48, 0, 0" % T[0])
        g("v_sad_u8 %s, v49, 0, %s" % (T[0], T[0]))
        g("v_cmp_ne_u32 vcc, 32, %s" % T[0])
        g("s_cbranch_vccnz L_chk0")
        g.label("L_chk2")
        g("v_readlane_b32 %s, v48, %s" % (sT0, sG))
        g("v_readlane_b32 %s, v49, %s" % (sT1, sG))
        g("s_nop 3")
        g("s_cmp_eq_u64 s[85:86], s[42:43]") if False else None
        g("s_xor_b32 %s, %s, s42" % (sT0, sT0))
        g("s_xor_b32 %s, %s, s43" % (sT1, sT1))
        g("s_or_b32 %s, %s, %s" % (sT0, sT0, sT1))
        g("s_cmp_eq_u32 %s, 0" % sT0)
        g("s_cselect_b32 %s, 1, 0" % sFast)
        if o.get("noFast"): g("s_mov_b32 %s, 0" % sFast)
        g("v_mov_b32 %s, %s" % (T[0], sFast))
        g("ds_write_b32 %s, %s offset:32" % (vBase, T[0]))
        g("v_mov_b32 v127, v46")
        g("s_waitcnt lgkmcnt(0)")
        g("s_barrier")
        for l in g.qloads(): g(l)
        g.vdma("v127", 16, 24)
        g("s_waitcnt vmcnt(8)")
        e = g.lab("Lspec"); g("s_branch %s" % e)
        g.poll(g.qloads(), range(XB, XB + 16), spec_entry=e)
        g.stamp("B", "q1")
        g.sphase()
        g.vdma("v127", 24, 32)
        g("v_and_b32 v126, 0xff, v127")
        g("v_lshrrev_b32 v125, 8, v127")
        g("v_lshl_add_u32 v126, v125, 10, v126")
        g("s_waitcnt lgkmcnt(0)")
        for kb in (0, 1):
            g.pvm(kb, True)
        g("s_lshl_b32 s42, %s, 17" % sH)
        g("s_lshl_b32 %s, %s, 7" % (sT0, sC))
        g("s_add_u32 s42, s42, %s" % sT0)
        def wol(i0, i1):
            for i in range(i0, i1):
                kb, hf, tp = i >> 2, (i >> 1) & 1, i & 1
                g("s_mov_b32 m0, 0x%x" % (L_T + i * 1024 - tp * 64))
                g("s_add_u32 %s, s42, %d" % (sT0, (kb * 32 + hf * 4) * 1024))
                g("buffer_load_dwordx4 v126, %s, %s offen offset:%d nt lds" % (ST2, sT0, tp * 64))
        wol(0, 8)
        g("s_waitcnt vmcnt(16)")
        g.pvm(2, True)
        wol(8, 16)
        g("s_waitcnt vmcnt(16)")
        g.stamp("B", "vdone")
        g.pvm(3, True)
        g.owrite()
        g.label("L_loopB")
        g("ds_read_b128 %s, %s" % (vr(XB + 8), vBase))
        g("ds_read_b128 %s, %s offset:16" % (vr(XB + 12), vBase))
        g("ds_read2st64_b64 %s, %s offset0:0 offset1:1" % (vr(XB), vOR))
        g("ds_read2st64_b64 %s, %s offset0:2 offset1:3" % (vr(XB + 4), vOR))
        g("s_waitcnt lgkmcnt(3)")
        m = XB + 8
        g("v_max_f32 %s, v%d, v%d" % (T[0], m, m + 1))
        g("v_max3_f32 %s, %s, v%d, v%d" % (T[0], T[0], m + 2, m + 3))
        for i in range(4): g("v_sub_f32 v%d, v%d, %s" % (m + i, m + i, T[0]))
        for i in range(4): g("v_exp_f32 v%d, v%d" % (m + i, m + i))
        g("s_waitcnt lgkmcnt(0)")
        g("v_mul_f32 %s, v%d, v%d" % (T[1], m, XB))
        g("v_mul_f32 %s, v%d, v%d" % (T[2], m, XB + 1))
        for i in range(1, 4):
            g("v_fmac_f32 %s, v%d, v%d" % (T[1], m + i, XB + 2 * i))
            g("v_fmac_f32 %s, v%d, v%d" % (T[2], m + i, XB + 2 * i + 1))
        g("v_cvt_pk_bf16_f32 %s, %s, %s" % (T[1], T[1], T[2]))
        g("v_mul_f32 %s, v%d, v%d" % (T[3], m, m + 4))
        for i in range(1, 4): g("v_fmac_f32 %s, v%d, v%d" % (T[3], m + i, m + 4 + i))
        g("v_min_u32 %s, -2, %s" % (T[1], T[1]))
        g("s_mov_b64 vcc, 2")
        g("v_cndmask_b32 %s, %s, %s, vcc" % (T[0], T[0], T[3]))
        g("v_min_u32 %s, -2, %s" % (T[0], T[0]))
        g.pub(["buffer_store_dword %s, %s, %s, %s offen" % (T[1], vL4, WS, sO1st),
               "s_mov_b64 exec, 3",
               "buffer_store_dword %s, %s, %s, %s offen" % (T[0], vL32, WS, sS1st),
               "s_mov_b64 exec, -1"])
        g("s_cmp_eq_u32 %s, 1" % sLayer)
        g("s_cbranch_scc1 L_wodone")
        g.stamp("B", "H1pub0")
        g("s_waitcnt vmcnt(2)")
        for t in range(4):
            for kb in range(4):
                if t * 4 + kb >= 6: g("s_waitcnt lgkmcnt(10)")
                for hf in range(2):
                    g("ds_read_b64_tr_b16 %s, %s offset:%d" % (ar(192 + (t * 4 + kb) * 4 + 2 * hf, 2), vTT, ((kb * 2 + hf) * 4 + t) * 512))
        g("s_waitcnt lgkmcnt(0)")
        g.label("L_wodone")
        ld = ["buffer_load_dwordx4 %s, %s, %s, %s offen offset:%d sc1" % (vr(XB + 4 * kb), vH1ld, WS, sO1ld, kb * 64) for kb in range(4)]
        ld += ["buffer_load_dwordx4 %s, %s, %s, %s offen sc1" % (vr(XB + 16), vS1a, WS, sS1ld),
               "buffer_load_dwordx4 %s, %s, %s, %s offen sc1" % (vr(XB + 20), vS1b, WS, sS1ld),
               "buffer_load_dwordx4 %s, %s, %s, %s offen offset:32 sc1" % (vr(XB + 24), vS1a, WS, sS1ld)]
        g.poll(ld, range(XB, XB + 28))
        m = XB + 16
        fill = ["v_max3_f32 %s, v%d, v%d, v%d" % (T[0], m, m + 1, m + 2),
                "v_max3_f32 %s, v%d, v%d, v%d" % (T[1], m + 3, m + 4, m + 5),
                "v_max3_f32 %s, %s, v%d, v%d" % (T[0], T[0], m + 6, m + 7),
                "v_max_f32 %s, %s, %s" % (T[0], T[0], T[1])]
        fill += ["v_sub_f32 v%d, v%d, %s" % (m + i, m + i, T[0]) for i in range(4)]
        fill += ["v_exp_f32 v%d, v%d" % (m + i, m + i) for i in range(4)]
        fill += ["v_mul_f32 %s, v%d, v%d" % (T[1], m, m + 8)]
        fill += ["v_fmac_f32 %s, v%d, v%d" % (T[1], m + i, m + 8 + i) for i in range(1, 4)]
        fill += ["v_mov_b32 %s, %s" % (T[2], T[1]),
                 "v_permlane16_swap_b32 %s, %s" % (T[1], T[2]),
                 "v_add_f32 %s, %s, %s" % (T[1], T[1], T[2]),
                 "v_rcp_f32 %s, %s" % (T[1], T[1])]
        fill += ["v_mul_f32 v%d, v%d, %s" % (m + i, m + i, T[1]) for i in range(4)]
        for t in range(4):
            for kb in range(4):
                g("%s %s, %s, %s, %s" % (MF, vr(DB + 4 * t), vr(XB + 4 * kb), ar(192 + (t * 4 + kb) * 4), "0" if kb == 0 else vr(DB + 4 * t)))
                for k in range(2):
                    if fill: g(fill.pop(0))
        while fill: g(fill.pop(0))
        for t in range(4):
            y = T[2 + t]
            g("v_mul_f32 %s, v%d, v%d" % (y, m, DB + 4 * t))
            for r in range(1, 4): g("v_fmac_f32 %s, v%d, v%d" % (y, m + r, DB + 4 * t + r))
        g("v_cndmask_b32 %s, %s, %s, %s" % (T[2], T[2], T[4], mGE2))
        g("v_cndmask_b32 %s, %s, %s, %s" % (T[3], T[3], T[5], mGE2))
        g("v_permlane16_swap_b32 %s, %s" % (T[2], T[3]))
        g("v_add_f32 %s, %s, %s" % (T[2], T[2], T[3]))
        g("v_min_u32 %s, -2, %s" % (T[2], T[2]))
        g("buffer_store_dword %s, %s, %s, %s offen sc1" % (T[2], vH2st, WS, sH2st))
        g("s_lshl_b32 %s, %s, 3" % (sT0, sLayer))
        g("s_add_u32 %s, %s, %s" % (sT0, sT0, sG))
        g("s_cmp_gt_u32 %s, 8" % sT0)
        g("s_cbranch_scc1 L_endB")
        if o.get("h2sleep"): g("s_sleep %d" % o["h2sleep"])
        g.poll(["buffer_load_dwordx4 %s, %s, %s, %s offen sc1" % (vr(XB), vL16, WS, sH2ld),
                "buffer_load_dwordx4 %s, %s, %s, %s offen offset:1024 sc1" % (vr(XB + 4), vL16, WS, sH2ld)], range(XB, XB + 8))
        for i in range(4): g("v_add_f32 v%d, v%d, v%d" % (XB + i, XB + i, XB + 4 + i))
        g("v_permlane32_swap_b32 v%d, v%d" % (XB, XB + 1))
        g("v_permlane32_swap_b32 v%d, v%d" % (XB + 2, XB + 3))
        g("v_add_f32 v%d, v%d, v%d" % (XB, XB, XB + 1))
        g("v_add_f32 v%d, v%d, v%d" % (XB + 2, XB + 2, XB + 3))
        g("v_permlane16_swap_b32 v%d, v%d" % (XB, XB + 2))
        g("v_add_f32 %s, v%d, v%d" % (T[0], XB, XB + 2))
        g("v_add_f32_dpp %s, %s, %s row_ror:4 row_mask:0xf bank_mask:0xf" % (T[0], T[0], T[0]))
        g("v_add_f32_dpp %s, %s, %s row_ror:8 row_mask:0xf bank_mask:0xf" % (T[0], T[0], T[0]))
        g("v_add_f32 %s, %s, %s" % (T[0], vRes, T[0]))
        g.final_pack(T[0])
        g("v_min_u32 %s, -2, %s" % (T[1], T[1]))
        g("s_mov_b64 exec, 0x000f000f")
        g.pub("buffer_store_dword %s, %s, %s, %s offen" % (T[1], vH3st, WS, sH3st))
        g("s_mov_b64 exec, -1")
        g("s_barrier")
        g("v_add_f32 %s, %s, %s" % (T[3], vRes, vB2))
        g("s_barrier")
        g("ds_read_b32 %s, %s" % (T[4], vMR))
        g("ds_read_b32 %s, %s offset:64" % (T[5], vMR))
        g("ds_read_b32 %s, %s offset:128" % (T[6], vMR))
        g("s_waitcnt lgkmcnt(0)")
        g("v_add_f32 %s, %s, %s" % (T[4], T[4], T[5]))
        g("v_add_f32 %s, %s, %s" % (T[3], T[3], T[6]))
        g("v_add_f32 %s, %s, %s" % (T[0], T[3], T[4]))
        g.final_pack(T[0])
        g("s_cmp_eq_u32 %s, 1" % sLayer)
        g("s_cbranch_scc1 L_out")
        g("v_min_u32 %s, -2, %s" % (T[1], T[1]))
        g("s_mov_b64 exec, 0x000f000f")
        g.pub("buffer_store_dword %s, %s, %s, %s offen offset:1024" % (T[1], vH3st, WS, sH3st))
        g("s_mov_b64 exec, -1")
        g.stamp("B", "H5pub")
        g.poll(["buffer_load_dwordx4 %s, %s, %s, %s offen offset:1024 sc1" % (vr(DB + 28), vL16, WS, sGld)], range(DB + 28, DB + 32))
        g("s_mov_b32 %s, 1" % sLayer)
        g("s_mov_b32 s8, s12\ns_mov_b32 s9, s13")
        g.xgemv(128)
        g.pack16_pub(sTst)
        g.stamp("B", "q2pub")
        g("s_barrier")
        g.poll(g.qloads(), range(XB, XB + 16))
        g.stamp("B", "q2")
        g.sphase()
        g("s_waitcnt lgkmcnt(0)")
        for kb in range(4): g.pvm(kb)
        g.owrite()
        g.stamp("B", "Bo1")
        g("s_branch L_loopB")
        g.label("L_out")
        g("s_lshl_b32 %s, %s, 5" % (sT0, sJ))
        g("v_add_u32 %s, %s, %s" % (T[2], sT0, vH3st))
        g("s_mov_b64 exec, 0x000f000f")
        g("global_store_dword %s, %s, %s" % (T[2], T[1], pOUT))
        g("s_mov_b64 exec, -1")
        g.label("L_endB")
        g.stamp("B", "end")
        self.stamp_out("B")
        g("s_endpgm")
        for ls, sts, lj in self.stubs:
            g.label(ls)
            for s in sts: g(s)
            g("s_branch %s" % lj)
        g.label("L_end")
        self.a.lines = hz.pad(self.a.lines, verbose=True)
        return self.a.finish(256, 256, LDS_BYTES, 512, 256)

    def common_setup(self):
        g = self
        g("v_lshlrev_b32 %s, 4, v0" % vL16)
        g("s_lshl_b32 %s, %s, 11" % (sT2, sW))
        g("s_add_u32 %s, %s, 0x%x" % (sT2, sT2, L_ST))
        g("v_add_u32 %s, %s, %s" % (vStW, sT2, vL16))
        g("v_lshlrev_b32 %s, 4, v32" % vA16)
        g("v_and_b32 %s, 3, v0" % T[0])
        g("v_cmp_eq_u32 vcc, 1, %s" % T[0])
        g("v_mov_b32 %s, 1024" % T[1])
        g("v_cndmask_b32 %s, 0, %s, vcc" % (T[0], T[1]))
        g("v_add3_u32 %s, %s, %s, %s" % (vStR, T[0], sT2, vA16))
        g("v_lshlrev_b32 %s, 3, v0" % vT8)
        g("v_add_u32 %s, %s, %s" % (vT8, sLw, vT8))
        g("v_add_u32 %s, %s, %s" % (vRW, sLw, vL16))
        g("v_lshlrev_b32 %s, 1, v0" % vL2)
        g("v_add_u32 %s, %s, %s" % (vPW, sT2, vL2))
        g("s_lshl_b32 %s, %s, 9" % (sT3, sW))
        g("s_add_u32 %s, %s, 0x%x" % (sT3, sT3, L_OB))
        g("v_lshlrev_b32 %s, 2, v0" % vOW)
        g("v_add_u32 %s, %s, %s" % (vOW, sT3, vOW))
        g("s_lshl_b32 %s, %s, 2" % (sT3, sW))
        g("s_add_u32 %s, %s, 0x%x" % (sT3, sT3, L_SB))
        g("v_mov_b32 %s, %s" % (vSW, sT3))
        g("s_mov_b32 s72, 0xffff0000\ns_mov_b32 s73, 0\ns_mov_b32 s74, 0\ns_mov_b32 s75, 0xffff")
        g("s_mov_b32 s76, 0\ns_mov_b32 s77, 0xffff0000\ns_mov_b32 s78, 0\ns_mov_b32 s79, -1")
        g("s_mov_b32 %s, 0\ns_mov_b32 %s, 0\ns_mov_b32 %s, 0" % (sLayer, sFast, sCnt))
        g("s_mov_b32 %s, %s" % (sC1, f32(128 ** -0.5 * math.log2(math.e))))
        g("s_mov_b32 %s, 0x3f803f80" % sOnes)
        g("s_lshl_b32 %s, %s, 13" % (sGld, sG))
        g("s_add_u32 %s, %s, 0x%x" % (sGld, sGld, W_G))
        g("s_lshl_b32 %s, %s, 8" % (sQ6ld, sH))
        g("s_add_u32 %s, %s, 0x%x" % (sQ6ld, sQ6ld, W_Q6))
        for i in range(4): g("v_mov_b32 v%d, %s" % (XB + i, sOnes))
        g("ds_write_b128 %s, %s offset:1024" % (vStW, vr(XB)))

    def stamp_out(self, role):
        if not self.stamps: return
        g = self
        g("s_waitcnt lgkmcnt(0)")
        g("v_mov_b32 v64, 0")
        for i, nme in enumerate(STAMP_REGS):
            g("v_writelane_b32 v64, s%d, %d" % (STAMP_REGS[i], i))
        g("s_lshl_b32 %s, s2, 2" % sT0)
        g("s_add_u32 %s, %s, %s" % (sT0, sT0, sW))
        g("s_lshl_b32 %s, %s, 6" % (sT0, sT0))
        g("s_add_u32 %s, %s, 0x%x" % (sT0, sT0, W_STAMP))
        g("v_lshlrev_b32 v65, 2, v0")
        g("v_add_u32 v65, %s, v65" % sT0)
        g("s_mov_b64 exec, 0xffff")
        g("global_store_dword v65, v64, %s" % pWS)

if __name__ == "__main__":
    import json
    out = sys.argv[1]
    stamps = "--stamps" in sys.argv
    opt = {}
    for x in sys.argv[2:]:
        if "=" in x:
            k, v = x.split("=", 1)
            opt[k] = int(v) if v.lstrip("-").isdigit() else v
    gg = G(stamps, opt)
    open(out, "w").write(gg.build())
    if stamps:
        json.dump(gg.nst, open(out + ".stamps.json", "w"))
```
